```python
import torch

def _softmax(x, axis=-1):
    return torch.softmax(x, dim=axis)
def _gelu(x):
    return torch.nn.functional.gelu(x, approximate="tanh")
def _silu(x):
    return torch.nn.functional.silu(x)
def _sigmoid(x):
    return torch.sigmoid(x)
def _layernorm(x, axis=-1, eps=1e-5):
    m = x.mean(dim=axis, keepdim=True)
    v = x.var(dim=axis, keepdim=True, unbiased=False)
    return (x - m) / torch.sqrt(v + eps)
def _scatter_add(tgt, idx, src, axis=0):
    return tgt.clone().index_add_(axis, idx, src)
def _segment_sum(src, seg, n):
    out = torch.zeros((n,) + src.shape[1:], dtype=src.dtype)
    return out.index_add_(0, seg, src)
def _pad(x, pw):
    flat = tuple(v for pair in reversed(pw) for v in pair)
    return torch.nn.functional.pad(x, flat)

kernel_name = 'sequential_preLN__mha_block__dense_activation_gelu__prompt'

def setup_inputs():

    _w = (lambda a: (lambda t: t.to(torch.bfloat16) if t.is_floating_point() else t)(torch.as_tensor(a)))
    def _A_setup():
        B, S, D, H = 1, 2048, 576, 32
        return {
            "x": _w((lambda *s: torch.randn(*s, dtype=torch.bfloat16) * 0.05)(B, S, D)),
            "wqkv": _w((lambda *s: torch.randn(*s, dtype=torch.bfloat16) * 0.05)(D, 3 * D)),
            "wo": _w((lambda *s: torch.randn(*s, dtype=torch.bfloat16) * 0.05)(D, D)),
        }
    _A_in = _A_setup()

    def _B_setup():
        B, S, D, F = 1, 2048, 576, 4608
        return {
            "x": _w((lambda *s: torch.randn(*s, dtype=torch.bfloat16) * 0.05)(B, S, D)),
            "w1": _w((lambda *s: torch.randn(*s, dtype=torch.bfloat16) * 1.6)(D, F) * (D ** -0.5)),
            "b1": _w((lambda *s: torch.randn(*s, dtype=torch.bfloat16) * 1.6)(F) * 0.01),
            "w2": _w((lambda *s: torch.randn(*s, dtype=torch.bfloat16) * 0.2)(F, D) * (F ** -0.5)),
            "b2": _w((lambda *s: torch.randn(*s, dtype=torch.bfloat16) * 0.2)(D) * 0.01),
        }
    _B_in = _B_setup()

    return {
        "A_x": _A_in["x"],
        "A_wqkv": _A_in["wqkv"],
        "A_wo": _A_in["wo"],
        "B_x": _B_in["x"],
        "B_w1": _B_in["w1"],
        "B_b1": _B_in["b1"],
        "B_w2": _B_in["w2"],
        "B_b2": _B_in["b2"],
    }

def reference(A_x, A_wqkv, A_wo, B_x, B_w1, B_b1, B_w2, B_b2):
    def _A_ref(x, wqkv, wo):
        B, S, D = x.shape
        H = 32
        Dh = D // H
        qkv = (lambda x, *d: x.permute(*d))((x @ wqkv).reshape(B, S, 3, H, Dh), 2, 0, 3, 1, 4)
        q, k, v = qkv[0], qkv[1], qkv[2]
        scores = torch.einsum("bhqd,bhkd->bhqk", q, k) * (Dh ** -0.5)
        p = _softmax(scores, axis=-1)
        o = torch.einsum("bhqk,bhkd->bhqd", p, v)
        return (lambda x, *d: x.permute(*d))(o, 0, 2, 1, 3).reshape(B, S, D) @ wo

    def _B_ref(x, w1, b1, w2, b2):
        h = torch.einsum("bsd,df->bsf", x, w1) + b1
        h = _gelu(h)
        return torch.einsum("bsf,fd->bsd", h, w2) + b2

    x = A_x
    h = x + _A_ref(_layernorm(x, axis=-1), A_wqkv, A_wo)
    h2 = h + _B_ref(_layernorm(h, axis=-1), B_w1, B_b1, B_w2, B_b2)
    return h2
```

```python
import sys, os, subprocess, struct
sys.path.insert(0, "cdna_kernels")
import numpy as np
from cdna_launch import *
import cdna_launch as cl

TEMPL = """; @launch grid=({grid},1,1) block=({block},1,1) lds={lds}
.amdgcn_target "amdgcn-amd-amdhsa--gfx950"
.text
.globl mb_kernel
.p2align 8
.type mb_kernel,@function
mb_kernel:
    s_load_dwordx2 s[4:5], s[0:1], 0
    s_load_dwordx2 s[6:7], s[0:1], 8
    s_waitcnt lgkmcnt(0)
    s_mov_b32 s8, s4
    s_mov_b32 s9, s5
    s_mov_b32 s10, {outbytes}
    s_mov_b32 s11, 0x20000
    s_mov_b32 s12, s6
    s_mov_b32 s13, s7
    s_mov_b32 s14, {inbytes}
    s_mov_b32 s15, 0x20000
{init}
    s_mov_b32 s20, {iters}
    s_barrier
    s_memtime s[16:17]
    s_waitcnt lgkmcnt(0)
.p2align 6
L_loop:
{body}
    s_sub_u32 s20, s20, 1
    s_cmp_lg_u32 s20, 0
    s_cbranch_scc1 L_loop
    s_waitcnt vmcnt(0) lgkmcnt(0)
    s_nop 15
    s_nop 15
    s_memtime s[18:19]
    s_waitcnt lgkmcnt(0)
    s_sub_u32 s18, s18, s16
    v_lshrrev_b32 v1, 6, v0
    s_mul_i32 s21, s2, {nwaves}
    v_add_u32 v1, s21, v1
    v_lshlrev_b32 v1, 2, v1
    v_mov_b32 v2, s18
    v_and_b32 v3, 63, v0
    v_cmp_eq_u32 vcc, 0, v3
    s_and_saveexec_b64 s[22:23], vcc
    buffer_store_dword v2, v1, s[8:11], 0 offen
    s_waitcnt vmcnt(0)
    s_endpgm
.section .rodata,"a"
.p2align 6
.amdhsa_kernel mb_kernel
  .amdhsa_next_free_vgpr {nvgpr}
  .amdhsa_next_free_sgpr 102
  .amdhsa_accum_offset {accoff}
  .amdhsa_group_segment_fixed_size 0
  .amdhsa_kernarg_size 88
  .amdhsa_user_sgpr_count 2
  .amdhsa_user_sgpr_kernarg_segment_ptr 1
  .amdhsa_system_sgpr_workgroup_id_x 1
.end_amdhsa_kernel
"""

def build(asm, name, label="mb_kernel", nptrs=2, lists=False):
    s = with_harness_metadata(asm, label, nptrs, launch_lists=lists)
    open(f"/tmp/{name}.s", "w").write(s)
    r = subprocess.run(["clang", "-x", "assembler", "-target", "amdgcn-amd-amdhsa", "-mcpu=gfx950",
                        f"/tmp/{name}.s", "-o", f"/tmp/{name}.co"], capture_output=True, text=True)
    assert r.returncode == 0, r.stderr
    return f"/tmp/{name}.co"

_in = None
def run(name, body, init="", iters=200, nwaves=4, grid=256, lds=0, nvgpr=128, inbytes=1<<24, reps=3, norm=1, accoff=None, perwave=False):
    global _in
    outbytes = grid * nwaves * 4
    accoff = accoff or min(256, nvgpr)
    asm = TEMPL.format(grid=grid, block=nwaves*64, lds=lds, outbytes=outbytes, inbytes=inbytes, init=init, iters=iters,
                       body=body, nwaves=nwaves, nvgpr=nvgpr, accoff=accoff)
    co = build(asm, "mb_" + "".join(c if c.isalnum() else "_" for c in name))
    if not os.path.exists('/dev/kfd'):
        print(name, "assembled"); return None
    k = AsmKernel(co, "mb_kernel")
    out = DeviceBuffer(outbytes)
    if _in is None or _in.nbytes < inbytes:
        _in = DeviceBuffer.from_numpy((np.random.randn(inbytes//4)*0.5).astype(np.float32))
    ka = pack_ptr_kernargs([out.ptr, _in.ptr])
    for r in range(reps):
        k.launch((grid,1,1), (nwaves*64,1,1), ka, lds)
        cl._check(cl._hip.hipDeviceSynchronize())
    o = out.to_numpy(np.uint32, (grid*nwaves,)).astype(np.float64) / iters
    o2 = o.reshape(grid, nwaves).max(axis=1)
    print(f"{name:44s} w/CU={nwaves:2d} cyc/iter: wgmax-med={np.median(o2):8.1f} per-simd-wave={np.median(o2)/(nwaves/4)/norm:8.2f}  (min={o.min():8.1f} max={o.max():8.1f})")
    if perwave: print('     per-wave:', np.median(o.reshape(grid, nwaves), axis=0).round(1))
    k.unload()
    return np.median(o)
```

```python
import sys, os, subprocess, struct
sys.path.insert(0, "cdna_kernels")
import numpy as np
from cdna_launch import *
import cdna_launch as cl

TEMPL = """; @launch grid=({grid},1,1) block=({block},1,1) lds={lds}
.amdgcn_target "amdgcn-amd-amdhsa--gfx950"
.text
.globl mb_kernel
.p2align 8
.type mb_kernel,@function
mb_kernel:
    s_load_dwordx2 s[4:5], s[0:1], 0
    s_load_dwordx2 s[6:7], s[0:1], 8
    s_waitcnt lgkmcnt(0)
    s_mov_b32 s8, s4
    s_mov_b32 s9, s5
    s_mov_b32 s10, {outbytes}
    s_mov_b32 s11, 0x20000
    s_mov_b32 s12, s6
    s_mov_b32 s13, s7
    s_mov_b32 s14, {inbytes}
    s_mov_b32 s15, 0x20000
{init}
    s_mov_b32 s20, {iters}
    s_barrier
    s_memtime s[16:17]
    s_waitcnt lgkmcnt(0)
.p2align 6
L_loop:
{body}
    s_sub_u32 s20, s20, 1
    s_cmp_lg_u32 s20, 0
    s_cbranch_scc1 L_loop
    s_waitcnt vmcnt(0) lgkmcnt(0)
    s_nop 15
    s_nop 15
    s_memtime s[18:19]
    s_waitcnt lgkmcnt(0)
    s_sub_u32 s18, s18, s16
    v_lshrrev_b32 v1, 6, v0
    s_mul_i32 s21, s2, {nwaves}
    v_add_u32 v1, s21, v1
    v_lshlrev_b32 v1, 2, v1
    v_mov_b32 v2, s18
    v_and_b32 v3, 63, v0
    v_cmp_eq_u32 vcc, 0, v3
    s_and_saveexec_b64 s[22:23], vcc
    buffer_store_dword v2, v1, s[8:11], 0 offen
    s_waitcnt vmcnt(0)
    s_endpgm
.section .rodata,"a"
.p2align 6
.amdhsa_kernel mb_kernel
  .amdhsa_next_free_vgpr {nvgpr}
  .amdhsa_next_free_sgpr 102
  .amdhsa_accum_offset {accoff}
  .amdhsa_group_segment_fixed_size 0
  .amdhsa_kernarg_size 88
  .amdhsa_user_sgpr_count 2
  .amdhsa_user_sgpr_kernarg_segment_ptr 1
  .amdhsa_system_sgpr_workgroup_id_x 1
.end_amdhsa_kernel
"""

def build(asm, name, label="mb_kernel", nptrs=2, lists=False):
    s = with_harness_metadata(asm, label, nptrs, launch_lists=lists)
    open(f"/tmp/{name}.s", "w").write(s)
    r = subprocess.run(["clang", "-x", "assembler", "-target", "amdgcn-amd-amdhsa", "-mcpu=gfx950",
                        f"/tmp/{name}.s", "-o", f"/tmp/{name}.co"], capture_output=True, text=True)
    assert r.returncode == 0, r.stderr
    return f"/tmp/{name}.co"

_in = None
_fl = None
import ctypes
def run(name, body, init="", iters=200, nwaves=4, grid=256, lds=0, nvgpr=128, inbytes=1<<24, reps=3, norm=1, accoff=None, perwave=False, flush=0):
    global _in
    outbytes = grid * nwaves * 4
    accoff = accoff or min(256, nvgpr)
    asm = TEMPL.format(grid=grid, block=nwaves*64, lds=lds, outbytes=outbytes, inbytes=inbytes, init=init, iters=iters,
                       body=body, nwaves=nwaves, nvgpr=nvgpr, accoff=accoff)
    co = build(asm, "mb_" + "".join(c if c.isalnum() else "_" for c in name))
    if not os.path.exists('/dev/kfd'):
        print(name, "assembled"); return None
    k = AsmKernel(co, "mb_kernel")
    out = DeviceBuffer(outbytes)
    if _in is None or _in.nbytes < inbytes:
        _in = DeviceBuffer.from_numpy((np.random.randn(inbytes//4)*0.5).astype(np.float32))
    ka = pack_ptr_kernargs([out.ptr, _in.ptr])
    global _fl
    if flush and _fl is None: _fl = DeviceBuffer(1 << 30)
    for r in range(reps):
        if flush:
            cl._check(cl._hip.hipMemset(ctypes.c_void_p(_fl.ptr), r, ctypes.c_size_t(flush)))
            cl._check(cl._hip.hipDeviceSynchronize())
        k.launch((grid,1,1), (nwaves*64,1,1), ka, lds)
        cl._check(cl._hip.hipDeviceSynchronize())
    o = out.to_numpy(np.uint32, (grid*nwaves,)).astype(np.float64) / iters
    o2 = o.reshape(grid, nwaves).max(axis=1)
    print(f"{name:44s} w/CU={nwaves:2d} cyc/iter: wgmax-med={np.median(o2):8.1f} per-simd-wave={np.median(o2)/(nwaves/4)/norm:8.2f}  (min={o.min():8.1f} max={o.max():8.1f})")
    if perwave: print('     per-wave:', np.median(o.reshape(grid, nwaves), axis=0).round(1))
    k.unload()
    return np.median(o)
```

```python
from mb import *
init = "v_lshlrev_b32 v4, 4, v0\n v_and_b32 v4, 0x3ff, v4\n s_mov_b32 s25, 0\n"
def t(name, fill):
    body = ""
    for i in range(12):
        body += f"v_mfma_f32_16x16x32_bf16 v[{8+4*i}:{11+4*i}], v[60:63], v[64:67], v[{8+4*i}:{11+4*i}]\n"
        body += fill(i)
    run(name, body, init, iters=200, nwaves=4, lds=65536, nvgpr=256, norm=12)
A = lambda i, k: f"v_add_f32 v{70+(2*i+k)%24}, v68, v69\n"
E = lambda i: f"v_exp_f32 v{70+i}, v68\n"
D = lambda i: f"ds_read_b128 v[{100+4*i}:{103+4*i}], v4\n"
L = lambda i: f"buffer_load_dwordx4 v[{150+4*i}:{153+4*i}], v4, s[12:15], 0 offen\n"
S = lambda i: "s_add_u32 s25, s25, 4\n"
W = lambda i: "s_waitcnt vmcnt(40) lgkmcnt(8)\n"
t("bare", lambda i: "")
t("2add", lambda i: A(i,0)+A(i,1))
t("3add", lambda i: A(i,0)+A(i,1)+A(i,2))
t("exp", lambda i: E(i))
t("exp+add", lambda i: E(i)+A(i,0))
t("salu+2add", lambda i: S(i)+A(i,0)+A(i,1))
t("2add+salu", lambda i: A(i,0)+A(i,1)+S(i))
t("wait+2add", lambda i: W(i)+A(i,0)+A(i,1))
t("2add+wait", lambda i: A(i,0)+A(i,1)+W(i))
t("ds+2add", lambda i: (D(i) if i%3==0 else "")+A(i,0)+A(i,1))
t("2add+ds", lambda i: A(i,0)+A(i,1)+(D(i) if i%3==0 else ""))
t("ds+exp", lambda i: (D(i) if i%3==0 else "")+E(i))
t("exp+ds", lambda i: E(i)+(D(i) if i%3==0 else ""))
t("ds+exp+salu", lambda i: (D(i) if i%3==0 else "")+E(i)+S(i))
t("ld+2add", lambda i: (L(i) if i%4==0 else "")+A(i,0)+A(i,1))
t("ld+exp", lambda i: (L(i) if i%4==0 else "")+E(i))
t("exp+ld", lambda i: E(i)+(L(i) if i%4==0 else ""))
t("full: ds/ld/s/w +2add", lambda i: (D(i) if i<4 else L(i) if i in (4,7,10) else S(i) if i==5 else W(i) if i==11 else "")+A(i,0)+A(i,1))
t("full: ds/ld/s/w +exp", lambda i: (D(i) if i<4 else L(i) if i in (4,7,10) else S(i) if i==5 else W(i) if i==11 else "")+E(i))
t("full: alt", lambda i: (D(i) if i<4 else L(i) if i in (4,7,10) else S(i) if i==5 else W(i) if i==11 else "")+(E(i) if i%2 else A(i,0)+A(i,1)))
t("cvt2", lambda i: f"v_cvt_pk_bf16_f32 v{70+i}, v68, v69\n v_cvt_pk_bf16_f32 v{82+i}, v68, v69\n")
t("fma vop3 x2", lambda i: f"v_fma_f32 v{70+i}, v68, v68, v69\n v_mul_f32 v{82+i}, v68, -v69\n")
t("fmaak x2", lambda i: f"v_fmaak_f32 v{70+i}, v68, v68, 0x40001234\n v_fmaak_f32 v{82+i}, v68, v69, 0x40001234\n")
```

```python
from mb import *
O,NEG,SB,P,QM,QT,KM,KT,VF=100,16,32,64,72,76,80,88,92+24
def v(n,k=1): return f"v{n}" if k==1 else f"v[{n}:{n+k-1}]"
def mk(ds=1, wait=1, order="ec", x8=1, dspos=0, mf=1, nop=0, U=4, adds=1, prio=0):
    L=[]
    a=L.append
    def M(s):
        if mf: a(s)
    for t in range(U):
        S=SB+(t%2)*16; N=SB+((t+1)%2)*16
        ms=[f"v_mfma_f32_32x32x16_bf16 {v(N,16)}, {v(KM+((t+1)%2)*4,4)}, {v(QM,4)}, {v(NEG,16)}",
            f"v_mfma_f32_32x32x16_bf16 {v(O,16)}, {v(VF+((t+1)%2)*8+4,4)}, {v(P+4,4)}, {v(O,16)}",
            (f"v_mfma_f32_32x32x8_bf16 {v(N,16)}, {v(KT+((t+1)%2)*2,2)}, {v(QT,2)}, {v(N,16)}" if x8==1 else
             f"v_mfma_f32_32x32x16_bf16 {v(N,16)}, {v(KM+((t+1)%2)*4,4)}, {v(QM,4)}, {v(N,16)}" if x8==0 else
             f"v_mfma_f32_32x32x4_2b_bf16 v[140:171], {v(KT+((t+1)%2)*2,2)}, {v(QT,2)}, v[140:171]"),
            f"v_mfma_f32_32x32x16_bf16 {v(O,16)}, {v(VF+(t%2)*8,4)}, {v(P,4)}, {v(O,16)}"]
        rd=[[f"ds_read_b128 {v(KM+(t%2)*4,4)}, v4 offset:{t*2432}", f"ds_read_b64_tr_b16 {v(VF+(t%2)*8+4,2)}, v5 offset:{t*2432+1152}"],
            [f"ds_read_b64_tr_b16 {v(VF+(t%2)*8+6,2)}, v5 offset:{t*2432+1152+320}"],
            [f"ds_read_b32 {v(KT+(t%2)*2)}, v6 offset:{t*2432+1024}", f"ds_read_b64_tr_b16 {v(VF+((t+1)%2)*8,2)}, v5 offset:{t*2432+1152+640}"],
            [f"ds_read_b64_tr_b16 {v(VF+((t+1)%2)*8+2,2)}, v5 offset:{t*2432+1152+960}"]]
        if ds==2: rd=[r[:1] for r in rd]
        for k in range(4):
            E=[f"v_exp_f32 {v(S+4*k+i)}, {v(S+4*k+i)}" for i in range(4)]
            C=[f"v_cvt_pk_bf16_f32 {v(P+2*k+i)}, {v(S+4*k+2*i)}, {v(S+4*k+2*i+1)}" for i in range(2)]
            V={"ec":E+C, "eece":E[:3]+C[:1]+E[3:]+C[1:], "ce":C+E, "ecec":[E[0],C[0],E[1],E[2],C[1],E[3]], "e":E, "cee":[C[0]]+E+[C[1]]}[order]
            R=rd[k] if ds else []
            W=[f"s_waitcnt lgkmcnt({3+k%2})"] if (wait and ds) else []
            M(ms[k])
            if prio==1 and k==0 and t==0: L+=["s_xor_b32 s30, s30, 1","s_setprio 0","s_cbranch_scc0 LP","s_setprio 1","LP:"]
            if prio==2: L+=[f"s_setprio {[1,0,1,0][k]}"]
            if prio==3 and k%2==0: L+=[f"s_setprio {[1,0][k//2]}"]
            if prio==4 and k==0: L+=[f"s_setprio {[1,0][t%2]}"]
            if prio==5 and k==0 and t%2==0: L+=[f"s_setprio {[1,0][(t//2)%2]}"]
            if prio==6: L+=[f"s_setprio {3-k}"]
            if prio==7 and k==0: L+=[f"s_setprio {3-t%4}"]
            if prio==8: L+=[f"s_setprio {k}"]
            if dspos==0: L+=W+R+V
            if dspos==1: L+=W+R[:1]+V[:1]+R[1:]+V[1:]
            if dspos==2: L+=W+V[:1]+R[:1]+V[1:2]+R[1:]+V[2:]
            if dspos==3: L+=W+V+R
            if dspos==4: L+=R+V+W
            if dspos==5: L+=R+W+V
    if adds: L+=["v_add_u32 v8, 0x1234, v8","v_add_u32 v9, 0x1234, v9","v_add_u32 v10, 0x1234, v10"][:adds*3 if adds<2 else 1]
    return "\n".join(L)+"\n"
init="v_and_b32 v7, 63, v0\nv_lshlrev_b32 v4, 4, v7\nv_lshlrev_b32 v5, 3, v7\nv_and_b32 v6, 31, v0\nv_lshlrev_b32 v6, 2, v6\n"+"".join(f"v_mov_b32 v{i}, 0\n" for i in range(8,180))
import itertools
init+="v_lshrrev_b32 v7, 8, v0\ns_nop 1\nv_readfirstlane_b32 s30, v7\n"
for name,kw in [("base",{}),("add1",dict(adds=2)),("U8",dict(U=8)),("ce",dict(order="ce")),("ce U8",dict(order="ce",U=8))]+[(f"prio{p}",dict(prio=p)) for p in range(1,9)]+[(f"ce prio{p}",dict(prio=p,order="ce")) for p in range(1,9)]:
    for nw in (8,):
        run(f"{name} w{nw}", mk(**kw), init, iters=64//kw.get("U",4), nwaves=nw, lds=65536, nvgpr=192, norm=kw.get("U",4))
```
